```python
import torch

def _softmax(x, axis=-1):
    return torch.softmax(x, dim=axis)
def _gelu(x):
    return torch.nn.functional.gelu(x, approximate="tanh")
def _silu(x):
    return torch.nn.functional.silu(x)
def _sigmoid(x):
    return torch.sigmoid(x)
def _layernorm(x, axis=-1, eps=1e-5):
    m = x.mean(dim=axis, keepdim=True)
    v = x.var(dim=axis, keepdim=True, unbiased=False)
    return (x - m) / torch.sqrt(v + eps)
def _scatter_add(tgt, idx, src, axis=0):
    return tgt.clone().index_add_(axis, idx, src)
def _segment_sum(src, seg, n):
    out = torch.zeros((n,) + src.shape[1:], dtype=src.dtype)
    return out.index_add_(0, seg, src)
def _pad(x, pw):
    flat = tuple(v for pair in reversed(pw) for v in pair)
    return torch.nn.functional.pad(x, flat)

kernel_name = 'gated_mix__sliding_block__dense_activation_relu__prompt'

def setup_inputs():

    _w = (lambda a: (lambda t: t.to(torch.bfloat16) if t.is_floating_point() else t)(torch.as_tensor(a)))
    def _A_setup():
        B, S, D = 1, 2048, 448
        return {
            "x": _w((lambda *s: torch.randn(*s, dtype=torch.bfloat16) * 0.05)(B, S, D)),
            "wqkv": _w((lambda *s: torch.randn(*s, dtype=torch.bfloat16) * 1.6)(D, 3 * D)),
            "wo": _w((lambda *s: torch.randn(*s, dtype=torch.bfloat16) * 0.05)(D, D)),
        }
    _A_in = _A_setup()

    def _B_setup():
        B, S, D, Dff = 1, 2048, 448, 1792
        return {
            "x": _w((lambda *s: torch.randn(*s, dtype=torch.bfloat16) * 0.05)(B, S, D)),
            "w1": _w((lambda *s: torch.randn(*s, dtype=torch.bfloat16) * 0.2)(D, Dff)),
            "w2": _w((lambda *s: torch.randn(*s, dtype=torch.bfloat16) * 0.2)(Dff, D)),
        }
    _B_in = _B_setup()

    return {
        "A_x": _A_in["x"],
        "A_wqkv": _A_in["wqkv"],
        "A_wo": _A_in["wo"],
        "B_x": _B_in["x"],
        "B_w1": _B_in["w1"],
        "B_w2": _B_in["w2"],
        "gate_w": _w((lambda *s: torch.randn(*s, dtype=torch.bfloat16) * 0.05)(448) * 16.0),
    }

def reference(A_x, A_wqkv, A_wo, B_x, B_w1, B_w2, gate_w):
    def _A_ref(x, wqkv, wo):
        B, S, D = x.shape
        H = 16; Dh = D // H; W = 256
        qkv = (lambda x, *d: x.permute(*d))((x @ wqkv).reshape(B, S, 3, H, Dh), 2, 0, 3, 1, 4)
        q, k, v = qkv[0], qkv[1], qkv[2]
        scores = torch.einsum("bhqd,bhkd->bhqk", q, k) * (Dh ** -0.5)
        idx = torch.arange(S)
        mask = (idx[:, None] - idx[None, :] >= 0) & (idx[:, None] - idx[None, :] < W)
        scores = torch.where(mask[None, None], scores, -1e9)
        p = _softmax(scores, axis=-1)
        o = torch.einsum("bhqk,bhkd->bhqd", p, v)
        return (lambda x, *d: x.permute(*d))(o, 0, 2, 1, 3).reshape(B, S, D) @ wo

    def _B_ref(x, w1, w2):
        h = torch.einsum("bsd,df->bsf", x, w1)
        zero = torch.zeros_like(h)
        h = torch.maximum(h, zero)
        return torch.einsum("bsf,fd->bsd", h, w2)

    x = A_x
    g = _sigmoid((x * gate_w).sum(-1, keepdims=True))
    a = _A_ref(x, A_wqkv, A_wo)
    b = _B_ref(x, B_w1, B_w2)
    return g * a + (1 - g) * b
```

```python
import re

REG = re.compile(r'\b([vsa])(\d+)\b|\b([vsa])\[(\d+):(\d+)\]|\b(vcc|exec|m0|scc)(?:_lo|_hi)?\b')

def regs_of(tok):
    out = []
    for m in REG.finditer(tok):
        if m.group(1): out.append((m.group(1), int(m.group(2))))
        elif m.group(3): out += [(m.group(3), i) for i in range(int(m.group(4)), int(m.group(5)) + 1)]
        else: out.append((m.group(6), 0))
    return out

def split_ops(s):
    ops = []; d = 0; cur = ''
    for ch in s:
        if ch in '[(': d += 1
        if ch in '])': d -= 1
        if ch == ',' and d == 0: ops.append(cur.strip()); cur = ''
        else: cur += ch
    if cur.strip(): ops.append(cur.strip())
    return ops

TRANS = ('v_exp_f32', 'v_log_f32', 'v_rcp_f32', 'v_rsq_f32', 'v_sqrt_f32', 'v_sin_f32', 'v_cos_f32')

class Ins:
    __slots__ = ('text', 'op', 'cls', 'defs', 'uses', 'srcC', 'srcAB', 'dma', 'states', 'widestore')
    def __init__(self, text):
        self.text = text
        t = text.split(';')[0].strip()
        parts = t.split(None, 1)
        op = parts[0]; self.op = op
        ops = split_ops(parts[1]) if len(parts) > 1 else []
        self.defs = []; self.uses = []; self.srcC = []; self.srcAB = []; self.dma = False; self.states = 1
        self.widestore = []
        if op.startswith('v_mfma'):
            self.cls = 'mfma'
            self.defs = regs_of(ops[0]); self.srcAB = regs_of(ops[1]) + regs_of(ops[2]); self.srcC = regs_of(ops[3])
            self.uses = self.srcAB + self.srcC
        elif op.startswith('v_'):
            self.cls = 'trans' if op.replace('_e32', '').replace('_e64', '') in TRANS else 'valu'
            if op.startswith('v_cmp'):
                self.defs = regs_of(ops[0]); self.uses = sum((regs_of(o) for o in ops[1:]), [])
            elif op.startswith('v_permlane') and 'swap' in op:
                self.defs = regs_of(ops[0]) + regs_of(ops[1]); self.uses = list(self.defs)
            elif op.startswith(('v_add_co', 'v_sub_co', 'v_addc_co')):
                self.defs = regs_of(ops[0]) + regs_of(ops[1]); self.uses = sum((regs_of(o) for o in ops[2:]), [])
            else:
                self.defs = regs_of(ops[0]); self.uses = sum((regs_of(o) for o in ops[1:]), [])
                if op.startswith(('v_fmac', 'v_pk_fmac')): self.uses += self.defs
        elif op.startswith('ds_'):
            self.cls = 'ds'
            if op.startswith(('ds_read', 'ds_bpermute', 'ds_swizzle', 'ds_permute')):
                self.defs = regs_of(ops[0]); self.uses = sum((regs_of(o) for o in ops[1:]), [])
            else:
                self.uses = sum((regs_of(o) for o in ops), [])
        elif op.startswith(('buffer_', 'global_')):
            self.cls = 'vmem'
            islds = bool(re.search(r'\blds\b', t))
            if islds:
                self.dma = True; self.uses = sum((regs_of(o) for o in ops), []) + [('m0', 0)]
            elif 'load' in op:
                self.defs = regs_of(ops[0]); self.uses = sum((regs_of(o) for o in ops[1:]), [])
            else:
                self.uses = sum((regs_of(o) for o in ops), [])
                if op.endswith(('x3', 'x4')):
                    self.widestore = regs_of(ops[0]) if op.startswith('buffer_') else regs_of(ops[1])
        elif op.startswith('s_'):
            self.cls = 'salu'
            if op == 's_nop': self.states = int(ops[0], 0) + 1
            elif op.startswith(('s_cmp', 's_cbranch', 's_branch', 's_waitcnt', 's_barrier', 's_endpgm', 's_setprio', 's_sleep', 's_bitcmp')):
                self.uses = sum((regs_of(o) for o in ops), [])
            else:
                self.defs = regs_of(ops[0]) if ops else []; self.uses = sum((regs_of(o) for o in ops[1:]), [])
                if 'saveexec' in op: self.defs += [('exec', 0)]
        else:
            raise ValueError('unknown instr: ' + text)

def need_states(p, c):
    n = 0
    pd = set(p.defs)
    if p.cls in ('valu', 'trans'):
        vd = {r for r in pd if r[0] in 'va'}
        sd = {r for r in pd if r[0] in ('s', 'vcc')}
        if c.cls == 'mfma' and vd & set(c.uses): n = max(n, 2)
        if c.op.startswith('v_permlane') and vd & set(c.uses): n = max(n, 2)
        if c.op.startswith(('v_readfirstlane', 'v_readlane')) and vd & set(c.uses): n = max(n, 1)
        if 'dpp' in c.text and vd & set(c.uses): n = max(n, 2)
        if p.cls == 'trans' and c.cls in ('valu', 'mfma', 'trans') and vd & set(c.uses): n = max(n, 1)
        if sd:
            if c.cls in ('valu', 'trans') and sd & set(c.uses): n = max(n, 2)
            if c.op.startswith(('v_readlane', 'v_writelane')) and sd & set(c.uses): n = max(n, 4)
            if c.cls == 'vmem' and sd & set(c.uses): n = max(n, 5)
            if c.cls == 'salu' and sd & set(c.uses): n = max(n, 1)
    if p.cls == 'mfma':
        big = '32x32' in p.op
        raw = 12 if big else 8
        if c.cls == 'mfma':
            if pd & set(c.srcAB): n = max(n, raw)
            if pd & set(c.srcC):
                if c.srcC != p.defs: n = max(n, 10 if big else 6)
            if pd & set(c.defs) and c.srcC != p.defs: n = max(n, raw)
        elif c.cls in ('valu', 'trans', 'vmem', 'ds'):
            if pd & (set(c.uses) | set(c.defs)): n = max(n, raw)
        if c.cls in ('valu', 'trans') and set(p.srcC) & set(c.defs): n = max(n, 7 if big else 3)
    if p.cls == 'salu' and ('m0', 0) in pd and c.dma: n = max(n, 1)
    if p.widestore:
        if set(p.widestore) & set(c.defs): n = max(n, 2)
    return n

class Asm:
    def __init__(self):
        self.lines = []
        self.hist = []
        self.vm = 0
        self.vm_done = 0
        self.lg = 0
        self.lg_done = 0
        self.nops = 0
    def raw(self, text):
        self.lines.append(text)
    def label(self, name):
        self.lines.append(name + ':')
    def comment(self, t):
        self.lines.append('    ; ' + t)
    def __call__(self, text, track=True):
        last = None
        for t in text.split('\n'):
            t = t.strip()
            if not t: continue
            last = self.one(t, track)
        return last
    def one(self, t, track=True):
        ins = Ins(t)
        dist = 0; need = 0
        for p in reversed(self.hist):
            k = need_states(p, ins) - dist
            if k > need: need = k
            dist += p.states
            if dist > 14: break
        if need > 0:
            nop = Ins('s_nop %d' % (need - 1)); self.hist.append(nop); self.lines.append('    ' + nop.text); self.nops += 1
        self.hist.append(ins); self.hist = self.hist[-24:]
        self.lines.append('    ' + t)
        if ins.cls == 'vmem' and track:
            self.vm += 1; return self.vm - 1
        if ins.cls == 'ds':
            self.lg += 1; return self.lg - 1
        return None
    def wait(self, vm=None, lg=None):
        parts = []
        if vm is not None and vm >= self.vm_done:
            n = self.vm - 1 - vm
            parts.append('vmcnt(%d)' % min(n, 63)); self.vm_done = max(self.vm_done, vm + 1)
        if lg is not None and lg >= self.lg_done:
            n = self.lg - 1 - lg
            parts.append('lgkmcnt(%d)' % min(n, 15)); self.lg_done = max(self.lg_done, lg + 1)
        if parts: self('s_waitcnt ' + ' '.join(parts))
    def wait_all_lg(self):
        self('s_waitcnt lgkmcnt(0)'); self.lg_done = self.lg
    def wait_all_vm(self):
        self('s_waitcnt vmcnt(0)'); self.vm_done = self.vm
    def text(self):
        return '\n'.join(self.lines) + '\n'
```

```python
import sys, math
from asmlib import Asm

NAME = "gated_mix__sliding_block__dense_activation_relu__prompt_kernel"

WS_EPOCH = 0
WS_F1 = 0x1000
WS_F2 = 0x21000
WS_G = 0x30000
WS_QKV = 0x100000
WS_AH = 0x800000
WS_SIZE = 0x1200000
WS_STAMP = 0x1180000
OOB = 0x7ff00000

class Cfg:
    stamps = ""
    exact_round = True
    poll_limit = 40000
    scramble = 0
    pro = 11
    quota = "3,3,3,3,2,2,2,2,1,2,1,2,1,2,1,2,1,2,1,1,0"
    pub0 = 10
    pub1 = 18
    pq_issue = 15
    pq_check = 18
    lpoll_pair = 5
    opub = 2
    opoll = 5
    ocheck = 8
    tpoll = 11
    tcheck = 14
    gq = "1,4,6"
    sleep = 2
    dbgt = 0
    x_nofill = 0
    x_nost = 0

def gen(cfg):
    a = Asm()
    HEAD = open('gated_mix__sliding_block__dense_activation_relu__prompt.s.ref').read().split('\n')
    hdr = [l for l in HEAD if l.startswith(';') and '@launch' not in l and 'Override launch' not in l and 'grid=ceil' not in l]
    for l in hdr: a.raw(l)
    a.raw("; @launch grid=(256,1,1) block=(512,1,1) lds=163840")
    a.raw('.amdgcn_target "amdgcn-amd-amdhsa--gfx950"\n.text\n.globl %s\n.p2align 8\n.type %s,@function' % (NAME, NAME))
    a.label(NAME)

    X, WQ, W1, BW, WO, WS, OUT, WP, AS = 8, 12, 16, 20, 24, 28, 32, 36, 84
    def srd(b): return "s[%d:%d]" % (b, b + 3)
    sW, sWL, sR, sCG, sIDX = 40, 41, 42, 43, 44
    sJ = [45 + j for j in range(7)]
    sXB, sTAG, sT0, sT1, sT2, sT3 = 52, 53, 54, 55, 56, 57
    sBOFF, sBSTR, sBLIM = 58, 59, 60
    sAOFF, sABASE = 61, 62
    sHEAD, sRA = 63, 3
    sRT, sCT, sRL, sROLE = 88, 89, 90, 91
    sP1STR, sP1COL, sCNT, sEPO = 92, 93, 94, 95
    sF1, sRO = 96, 97
    sAC = 52
    sPM, sPO, sADL, sTB = 84, 85, 86, 87
    sF0, sFa, sFb, sHM = 4, 5, 6, 7
    sST = 64
    vL, vL16, vXS, vWQ, vW1, vWP, vB, vBO = 1, 2, 3, 4, 5, 6, 7, 8
    vXR = [[9, 10, 11], [12, 13, 14]]
    vWR = [[15, 16, 17], [18, 19, 20]]
    vBR = [[21 + 3 * c + w for w in range(3)] for c in range(4)]
    vT0, vT1, vT2, vT3 = 33, 34, 35, 36
    vHS, vFL, vTAGV = 37, 38, 39
    vWF = [72, 88]
    vPK = 104
    vACC = 112
    vX = 128
    vPQ, vKVO, vPADM, vKW, vQO0, vQO1 = 9, 10, 11, 12, 13, 14
    vMX, vMC = 13, 14
    vVW, vKR, vVR, vPH, vAV, vC = 3, 4, 6, 5, 0, 8
    vF0, vF1, vF2, vF3 = 56, 57, 58, 59
    vPD0, vPD1, vPD2 = 64, 65, 116
    vS = 40
    vKF = 108
    vM0, vM1 = 240, 244
    vQ = 248
    vOA = 120
    vKL = [40, 44, 48]
    vVL = [120, 124, 252]
    KS, VS = 14, 17
    stl = [x for x in cfg.stamps.split(',') if x]
    assert len(stl) <= 10
    def stamp(name):
        if name in stl:
            i = stl.index(name)
            a("s_memrealtime s[%d:%d]" % (sST + 2 * i, sST + 2 * i + 1))
        if "c_" + name in stl:
            i = stl.index("c_" + name)
            a("s_memtime s[%d:%d]" % (sST + 2 * i, sST + 2 * i + 1))

    a("s_cmp_ge_u32 s2, 256")
    a("s_cbranch_scc1 L_end")
    a("s_load_dwordx16 s[64:79], s[0:1], 0")
    a("s_load_dwordx4 s[80:83], s[0:1], 64")
    if cfg.scramble:
        a("s_and_b32 s3, s2, 31"); a("s_lshl_b32 s3, s3, 3"); a("s_lshr_b32 s2, s2, 5"); a("s_or_b32 s2, s2, s3")
    if cfg.stamps or cfg.dbgt: a("s_memrealtime s[98:99]")
    a("s_getpc_b64 s[4:5]")
    a("v_lshlrev_b32 v%d, 7, v0" % vT0)
    a("v_cmp_gt_u32 vcc, CODE_BYTES, v%d" % vT0)
    a("s_and_saveexec_b64 s[6:7], vcc")
    a("s_cbranch_execz L_nopf")
    a("global_load_dword v252, v%d, s[4:5]" % (vT0), track=False)
    a.label("L_nopf")
    a("s_mov_b64 exec, -1")
    a("v_and_b32 v%d, 63, v0" % vL)
    a("v_lshrrev_b32 v%d, 6, v0" % vT0)
    a("v_lshlrev_b32 v%d, 4, v%d" % (vL16, vL))
    a("v_readfirstlane_b32 s%d, v%d" % (sW, vT0))
    sXCD, sQ = sF0, sFa
    a("s_and_b32 s%d, s2, 7" % sXCD)
    a("s_lshr_b32 s%d, s2, 3" % sIDX)
    a("s_lshr_b32 s%d, s%d, 1" % (sQ, sXCD))
    a("s_and_b32 s%d, s%d, 1" % (sT0, sQ))
    a("s_lshl_b32 s%d, s%d, 2" % (sT0, sT0))
    a("s_add_u32 s%d, s%d, s%d" % (sT0, sT0, sIDX))
    a("s_and_b32 s%d, s%d, 7" % (sT0, sT0))
    a("s_and_b32 s%d, s%d, 1" % (sT1, sXCD))
    a("s_lshl_b32 s%d, s%d, 3" % (sT1, sT1))
    a("s_add_u32 s%d, s%d, s%d" % (sR, sT0, sT1))
    a("s_lshr_b32 s%d, s%d, 3" % (sT1, sIDX))
    a("s_lshl_b32 s%d, s%d, 2" % (sCG, sQ))
    a("s_add_u32 s%d, s%d, s%d" % (sCG, sCG, sT1))
    a("s_lshl_b32 s%d, s%d, 1" % (sT1, sT1))
    a("s_add_u32 s%d, s%d, s%d" % (sT0, sT0, sT1))
    a("s_sub_u32 s%d, s%d, 7" % (sT1, sT0))
    a("s_cmp_ge_u32 s%d, 7" % sT0)
    a("s_cselect_b32 s%d, s%d, s%d" % (sT0, sT1, sT0))
    a("s_lshl_b32 s%d, s%d, 7" % (sJ[0], sT0))
    a("s_mul_i32 s%d, s%d, %d" % (sXB, sR, 128 * 896))
    a("s_lshl_b32 s%d, s%d, 10" % (sWL, sW))
    a("v_lshrrev_b32 v%d, 3, v0" % vT0)
    a("v_and_b32 v%d, 7, v0" % vT1)
    a("v_and_b32 v%d, 6, v%d" % (vT2, vT0))
    a("v_xor_b32 v%d, v%d, v%d" % (vT2, vT2, vT1))
    a("v_mul_u32_u24 v%d, 896, v%d" % (vXS, vT0))
    a("v_lshl_add_u32 v%d, v%d, 4, v%d" % (vXS, vT2, vXS))
    a("v_lshrrev_b32 v%d, 1, v%d" % (vT3, vT0))
    a("v_and_b32 v%d, 4, v%d" % (vT3, vT3))
    a("v_and_or_b32 v%d, v%d, 2, v%d" % (vT3, vT0, vT3))
    a("v_xor_b32 v%d, v%d, v%d" % (vT3, vT3, vT1))
    a("v_lshlrev_b32 v%d, 4, v%d" % (vT3, vT3))
    a("v_mul_u32_u24 v%d, 2688, v%d" % (vWQ, vT0))
    a("v_add_u32 v%d, v%d, v%d" % (vWQ, vWQ, vT3))
    a("v_mul_u32_u24 v%d, 3584, v%d" % (vW1, vT0))
    a("v_add_u32 v%d, v%d, v%d" % (vW1, vW1, vT3))
    for j in range(1, 7):
        a("s_add_u32 s%d, s%d, 128" % (sJ[j], sJ[j - 1]))
        a("s_cmp_ge_u32 s%d, 896" % sJ[j])
        a("s_cselect_b32 s%d, 0, s%d" % (sJ[j], sJ[j]))
    for b, size in ((X, 1835008), (WQ, 1204224), (W1, 1605632)):
        a("s_mov_b32 s%d, %d" % (b + 2, size)); a("s_mov_b32 s%d, 0x20000" % (b + 3))
    a("s_waitcnt lgkmcnt(0)")
    if cfg.stamps: a("s_memrealtime s[100:101]")
    def mksrd(b, lo, size):
        a("s_mov_b64 s[%d:%d], s[%d:%d]" % (b, b + 1, lo, lo + 1))
        if size is not None:
            a("s_mov_b32 s%d, %d" % (b + 2, size)); a("s_mov_b32 s%d, 0x20000" % (b + 3))
    mksrd(X, 64, None)
    mksrd(WQ, 66, None)

    U = {}
    def mk(kind, j, slot, p=None):
        U[(kind, p, j)] = dict(kind=kind, j=j, p=p, slot=slot); return U[(kind, p, j)]
    gsl = [(0, 1, 2), (3, 4, 5), (7, 8, 9), (10, 11, 12), (15, 16, 13), (17, 18, 19), (0, 1, 2)]
    grp = [[mk('xa', j, gsl[j][0]), mk('xb', j, gsl[j][1]), mk('w', j, gsl[j][2], 0)] for j in range(7)]
    w1u = [mk('w', j, s, 1) for j, s in enumerate((6, 7, 8, 9, 10, 11, 12))]
    w2u = [mk('w', j, s, 2) for j, s in enumerate((14, 15, 16, 17, 18, 19, 13))]
    bsl = [4, 5, 2, 3, 0, 1, 6, 7, 8, 9, 10, 11, 12, 13, 14, 15]
    bu = [mk('b', n, bsl[n] if n < len(bsl) else None) for n in range(28)]
    bou = [mk('bo', n, None) for n in range(8)]
    order = grp[0] + grp[1] + [w1u[0], w2u[0]] + grp[2] + grp[3] + grp[4] + grp[5] + grp[6] + w1u[1:]
    rest2 = w2u[1:]; restb = bu[:13]
    k = 0
    while rest2 or restb:
        if restb: order.append(restb.pop(0))
        if rest2: order.append(rest2.pop(0))
    state = dict(next=0, free=set(range(20)), resv=set())
    def emit_dma(u):
        slot = u['slot']
        a("s_add_u32 m0, s%d, %d" % (sWL, slot * 8192))
        k = u['kind']; j = u['j']
        if k in ('xa', 'xb'):
            a("s_add_u32 s%d, s%d, s%d" % (sT3, sXB, sJ[j]))
            if k == 'xb': a("s_add_u32 s%d, s%d, %d" % (sT3, sT3, 64 * 896))
            u['vm'] = a("buffer_load_dwordx4 v%d, %s, s%d offen lds" % (vXS, srd(X), sT3))
        elif k == 'w':
            p = u['p']
            if p == 0:
                a("s_mul_i32 s%d, s%d, %d" % (sT3, sJ[j], 2688 // 2))
                a("s_lshl_b32 s%d, s%d, 7" % (sT2, sCG))
                a("s_add_u32 s%d, s%d, s%d" % (sT3, sT3, sT2))
                u['vm'] = a("buffer_load_dwordx4 v%d, %s, s%d offen lds" % (vWQ, srd(WQ), sT3))
            elif p == 1:
                a("s_mul_i32 s%d, s%d, s%d" % (sT3, sJ[j], sP1STR))
                a("s_add_u32 s%d, s%d, s%d" % (sT3, sT3, sP1COL))
                u['vm'] = a("buffer_load_dwordx4 v%d, %s, s%d offen lds" % (vWP, srd(WP), sT3))
            else:
                a("s_mul_i32 s%d, s%d, %d" % (sT3, sJ[j], 3584 // 2))
                a("s_lshl_b32 s%d, s%d, 7" % (sT2, sCG))
                a("s_add_u32 s%d, s%d, s%d" % (sT3, sT3, sT2))
                a("s_add_u32 s%d, s%d, %d" % (sT3, sT3, 11 * 128))
                u['vm'] = a("buffer_load_dwordx4 v%d, %s, s%d offen lds" % (vW1, srd(W1), sT3))
        elif k == 'b':
            u['vm'] = a("buffer_load_dwordx4 v%d, %s, s%d offen lds" % (vB, srd(BW), sBOFF))
            if j < 9:
                a("s_add_u32 s%d, s%d, s%d" % (sBOFF, sBOFF, sBSTR))
                a("s_sub_u32 s%d, s%d, s%d" % (sT3, sBOFF, sBLIM))
                a("s_cselect_b32 s%d, s%d, s%d" % (sBOFF, sBOFF, sT3))
                if j == 6: a("s_and_b32 s%d, s%d, s%d" % (BW + 2, BW + 2, sHM))
            elif j == 9:
                a("s_mul_i32 s%d, s%d, 57344" % (sBOFF, sRL))
            elif j < 25:
                a("s_add_u32 s%d, s%d, 57344" % (sBOFF, sBOFF))
                if j & 1:
                    a("s_cmp_ge_u32 s%d, %d" % (sBOFF, 26 * 57344))
                    a("s_cselect_b32 s%d, %d, s%d" % (sBOFF, 10 * 57344, sBOFF))
            elif j < 27:
                a("s_mov_b32 s%d, %d" % (sBOFF, (j + 1) * 57344))
        elif k == 'bo':
            a("s_add_u32 s%d, s%d, %d" % (sT3, sRO, j))
            a("s_and_b32 s%d, s%d, 7" % (sT3, sT3))
            a("s_mul_i32 s%d, s%d, %d" % (sT3, sT3, 56 * 896))
            u['vm'] = a("buffer_load_dwordx4 v%d, %s, s%d offen lds" % (vBO, srd(WO), sT3))
    def try_issue(u):
        if u['slot'] is None:
            assert u['j'] % 2 == 0
            c_ = [s_ for s_ in sorted(state['free']) if s_ % 2 == 0 and s_ + 1 in state['free'] and s_ not in state['resv']]
            if not c_: return False
            u['slot'] = c_[0]; U[(u['kind'], None, u['j'] + 1)]['slot'] = c_[0] + 1
        if u['slot'] not in state['free']: return False
        state['free'].remove(u['slot'])
        emit_dma(u); return True
    def issue(n=1):
        done = 0
        while done < n and state['next'] < len(order):
            if not try_issue(order[state['next']]): break
            state['next'] += 1; done += 1
        return done
    def release(u):
        state['free'].add(u['slot'])

    issue(6)
    mksrd(W1, 72, None)
    a("s_cmp_lt_u32 s%d, 5" % sCG)
    a("s_cselect_b64 s[%d:%d], s[66:67], s[72:73]" % (WP, WP + 1))
    a("s_cselect_b32 s%d, s%d, s%d" % (WP + 2, WQ + 2, W1 + 2))
    a("s_mov_b32 s%d, 0x20000" % (WP + 3))
    a("s_mov_b32 s%d, %d" % (sT0, 3584 // 2))
    a("s_cselect_b32 s%d, %d, s%d" % (sP1STR, 2688 // 2, sT0))
    a("s_cselect_b32 s%d, 16, -5" % sT0)
    a("s_cselect_b64 vcc, -1, 0")
    a("s_add_u32 s%d, s%d, s%d" % (sT0, sT0, sCG))
    a("s_lshl_b32 s%d, s%d, 7" % (sP1COL, sT0))
    a("v_cndmask_b32 v%d, v%d, v%d, vcc" % (vWP, vW1, vWQ))
    a("s_load_dword s%d, s[82:83], %d" % (sEPO, WS_EPOCH))
    issue(cfg.pro - 6)
    mksrd(WS, 82, WS_SIZE)
    mksrd(WO, 68, 401408)
    mksrd(OUT, 78, 1835008)
    a("s_lshr_b32 s%d, s%d, 4" % (sT0, sIDX))
    a("s_lshl_b32 s%d, s%d, 1" % (sHEAD, sXCD))
    a("s_add_u32 s%d, s%d, s%d" % (sHEAD, sHEAD, sT0))
    a("s_and_b32 s%d, s%d, 15" % (sRA, sIDX))
    a("s_mul_i32 s%d, s%d, 37" % (sT0, sIDX))
    a("s_lshr_b32 s%d, s%d, 8" % (sT0, sT0))
    a("s_mul_i32 s%d, s%d, 7" % (sT1, sT0))
    a("s_sub_u32 s%d, s%d, s%d" % (sCT, sIDX, sT1))
    a("s_and_b32 s%d, s%d, 3" % (sT0, sT0))
    a("s_lshl_b32 s%d, s%d, 2" % (sRT, sXCD))
    a("s_add_u32 s%d, s%d, s%d" % (sRT, sRT, sT0))
    a("s_add_u32 s%d, s%d, s%d" % (sT1, sT0, sCT))
    a("s_lshl_b32 s%d, s%d, 1" % (sRO, sT1))
    a("s_add_u32 s%d, s%d, s%d" % (sRL, sT1, sT0))
    a("s_and_b32 s%d, s%d, 7" % (sRL, sRL))
    a("s_lshl_b32 s%d, s%d, 1" % (sRL, sRL))
    a("s_add_u32 s%d, s%d, 10" % (sRL, sRL))
    a("s_sub_u32 s%d, s%d, 10" % (sT1, sRO))
    a("s_cmp_ge_u32 s%d, 10" % sRO)
    a("s_cselect_b32 s%d, s%d, s%d" % (sT0, sT1, sRO))
    a("s_cmp_lt_u32 s%d, 2" % sQ)
    a("s_cselect_b32 s%d, 1, 2" % sT1)
    a("s_cmp_ge_u32 s%d, 28" % sIDX)
    a("s_cselect_b32 s%d, s%d, 0" % (sROLE, sT1))
    a("s_cselect_b32 s%d, 0, -1" % sHM)
    a("s_mul_i32 s%d, s%d, 57344" % (sBOFF, sT0))
    a("s_mov_b32 s%d, 57344" % sBSTR)
    a("s_mov_b32 s%d, %d" % (sBLIM, 10 * 57344))
    a("s_mul_i32 s%d, s%d, %d" % (sABASE, sRT, 4 * 72 * 1024))
    a("s_add_u32 s%d, s%d, %d" % (sABASE, sABASE, WS_AH))
    a("s_lshl_b32 s%d, s%d, 11" % (sAOFF, sT0))
    mksrd(BW, 74, 1605632)
    a("s_lshl_b32 s%d, s%d, 7" % (sT1, sCT))
    a("v_add_u32 v%d, s%d, v%d" % (vB, sT1, vXS))
    a("s_cmp_eq_u32 s%d, 0" % sROLE)
    a("s_cbranch_scc1 L_role_done")
    a("s_mov_b64 s[%d:%d], s[72:73]" % (BW, BW + 1))
    a("s_cmp_eq_u32 s%d, 1" % sROLE)
    a("s_cselect_b32 s%d, s%d, 0" % (BW + 2, BW + 2))
    a("s_mul_i32 s%d, s%d, %d" % (sBOFF, sJ[0], 3584 // 2))
    a("s_mov_b32 s%d, %d" % (sBSTR, 64 * 3584))
    a("s_mov_b32 s%d, %d" % (sBLIM, 7 * 64 * 3584))
    a("v_add_u32 v%d, %d, v%d" % (vB, 27 * 128, vW1))
    a("s_mov_b64 s[%d:%d], s[76:77]" % (WO, WO + 1)); a("s_mov_b32 s%d, 896" % (WO + 2))
    a.label("L_role_done")
    a("v_and_b32 v%d, 15, v%d" % (vT0, vL))
    a("v_lshrrev_b32 v%d, 4, v%d" % (vT1, vL))
    a("v_and_b32 v%d, 6, v%d" % (vT2, vL))
    a("v_xor_b32 v%d, v%d, v%d" % (vT2, vT2, vT1))
    a("v_lshlrev_b32 v%d, 4, v%d" % (vT2, vT2))
    a("v_lshl_add_u32 v%d, v%d, 7, v%d" % (vT2, vT0, vT2))
    a("s_and_b32 s%d, s%d, 3" % (sT0, sW))
    a("s_lshl_b32 s%d, s%d, 12" % (sT0, sT0))
    a("v_add_u32 v%d, s%d, v%d" % (vXR[0][0], sT0, vT2))
    a("v_xor_b32 v%d, 64, v%d" % (vXR[1][0], vXR[0][0]))
    a("v_bfe_u32 v%d, v%d, 2, 2" % (vT0, vL))
    a("v_lshl_add_u32 v%d, v%d, 3, v%d" % (vT2, vT1, vT0))
    a("v_lshlrev_b32 v%d, 7, v%d" % (vT2, vT2))
    a("v_and_b32 v%d, 3, v%d" % (vT3, vL))
    a("v_lshl_add_u32 v%d, v%d, 3, v%d" % (vT2, vT3, vT2))
    a("v_bfe_u32 v%d, v%d, 3, 2" % (vT3, vL))
    a("s_lshr_b32 s%d, s%d, 2" % (sT0, sW))
    a("s_lshl_b32 s%d, s%d, 1" % (sT0, sT0))
    a("v_xor_b32 v%d, s%d, v%d" % (vT3, sT0, vT3))
    a("v_lshl_add_u32 v%d, v%d, 5, v%d" % (vWR[0][0], vT3, vT2))
    a("v_xor_b32 v%d, 32, v%d" % (vWR[1][0], vWR[0][0]))
    for g_ in vXR + vWR:
        a("v_add_u32 v%d, 0x10000, v%d" % (g_[1], g_[0]))
        a("v_add_u32 v%d, 0x20000, v%d" % (g_[2], g_[0]))
    stamp("setup")

    F = []
    def f(t): F.append(t)
    f("s_mul_i32 s%d, s%d, 0x9E3779B1" % (sTAG, sEPO))
    f("s_add_u32 s%d, s%d, 0x7F4A7C15" % (sTAG, sTAG))
    f("v_mov_b32 v%d, s%d" % (vTAGV, sTAG))
    f("v_cmp_eq_u32 vcc, 448, v0")
    f("v_mov_b32 v%d, %d" % (vFL, OOB))
    f("v_cndmask_b32_e64 v%d, v%d, 0, vcc" % (vFL, vFL))
    f("s_lshl_b32 s%d, s%d, 6" % (sF1, sR))
    f("s_add_u32 s%d, s%d, s%d" % (sF1, sF1, sCG))
    f("s_lshl_b32 s%d, s%d, 7" % (sF1, sF1))
    f("s_add_u32 s%d, s%d, %d" % (sF1, sF1, WS_F1))
    f("MARK pub")
    f("s_cmp_eq_u32 s%d, 0" % sW)
    f("s_cselect_b32 s%d, -1, 0" % sPM)
    f("s_cselect_b32 s%d, 0, %d" % (sPO, OOB))
    f("s_and_b32 s%d, s%d, 3" % (sF0, sW))
    f("s_lshr_b32 s%d, s%d, 2" % (sFa, sW))
    f("s_mul_i32 s%d, s%d, 144" % (sF0, sF0))
    f("s_add_u32 s%d, s%d, s%d" % (sF0, sF0, sFa))
    f("s_lshl_b32 s%d, s%d, 10" % (sF0, sF0))
    f("v_add_u32 v%d, s%d, v%d" % (vHS, sF0, vL16))
    f("MARK hs")
    f("v_lshrrev_b32 v%d, 1, v%d" % (vF0, vL))
    f("v_min_u32 v%d, 6, v%d" % (vF0, vF0))
    f("v_add_u32 v%d, 2, v%d" % (vF0, vF0))
    f("v_mul_u32_u24 v%d, 86, v%d" % (vF1, vF0))
    f("v_lshrrev_b32 v%d, 8, v%d" % (vF1, vF1))
    f("v_mul_u32_u24 v%d, 3, v%d" % (vF2, vF1))
    f("v_sub_u32 v%d, v%d, v%d" % (vF0, vF0, vF2))
    f("s_sub_u32 s%d, s%d, 2" % (sF0, sRA))
    f("v_add_u32 v%d, s%d, v%d" % (vF0, sF0, vF0))
    f("v_max_i32 v%d, 0, v%d" % (vF0, vF0))
    f("v_mul_u32_u24 v%d, 7, v%d" % (vF1, vF1))
    f("v_lshl_add_u32 v%d, v%d, 6, v%d" % (vF0, vF0, vF1))
    f("v_and_b32 v%d, 1, v%d" % (vF1, vL))
    f("v_mul_u32_u24 v%d, 27, v%d" % (vF1, vF1))
    f("s_mul_i32 s%d, s%d, 28" % (sF0, sHEAD))
    f("v_add_u32 v%d, s%d, v%d" % (vF1, sF0, vF1))
    f("v_lshrrev_b32 v%d, 6, v%d" % (vF1, vF1))
    f("v_add_u32 v%d, v%d, v%d" % (vF0, vF0, vF1))
    f("v_lshlrev_b32 v%d, 7, v%d" % (vF0, vF0))
    f("v_add_u32 v%d, %d, v%d" % (vPQ, WS_F1, vF0))
    f("s_lshr_b32 s%d, s%d, 1" % (sFa, sW))
    assert all((x * 86) >> 8 == x // 3 for x in range(2, 9))
    f("v_lshrrev_b32 v%d, 4, v%d" % (vF1, vL))
    f("v_and_b32 v%d, 15, v%d" % (vF0, vL))
    f("s_and_b32 s%d, s%d, 1" % (sFb, sW))
    f("s_cselect_b32 s%d, 3, 99" % sF0)
    f("v_cmp_eq_u32 vcc, s%d, v%d" % (sF0, vF1))
    f("v_cndmask_b32_e64 v%d, 0, -1, vcc" % vPADM)
    f("v_add_u32 v%d, s%d, v%d" % (vKVO, sWL, vL16))
    f("v_and_b32 v%d, %d, v%d" % (vF2, OOB, vPADM))
    f("v_or_b32 v%d, v%d, v%d" % (vKVO, vKVO, vF2))
    f("s_lshl_b32 s%d, s%d, 11" % (sFa, sFa))
    f("s_lshl_b32 s%d, s%d, 3" % (sF0, sFb))
    f("s_add_u32 s%d, s%d, s%d" % (sF0, sF0, sFa))
    f("v_add_u32 v%d, s%d, v%d" % (vQO0, sF0, vL16))
    f("v_add_u32 v%d, %d, v%d" % (vKW, KS * 8192, vQO0))
    f("v_cmp_eq_u32 vcc, 3, v%d" % vF1)
    f("v_mov_b32 v%d, %d" % (vF3, OOB))
    f("v_cndmask_b32 v%d, v%d, v%d, vcc" % (vQO1, vQO0, vF3))
    f("MARK kq")
    VB = VS * 8192
    f("v_lshrrev_b32 v%d, 5, v%d" % (vF2, vL))
    f("v_lshlrev_b32 v%d, 3, v%d" % (vF2, vF2))
    f("v_xor_b32 v%d, v%d, v%d" % (vF2, vF2, vF0))
    f("v_lshlrev_b32 v%d, 3, v%d" % (vF2, vF2))
    f("v_lshl_add_u32 v%d, v%d, 7, v%d" % (vF2, vF1, vF2))
    f("s_lshl_b32 s%d, s%d, 9" % (sF0, sFb))
    f("s_add_u32 s%d, s%d, s%d" % (sF0, sF0, sFa))
    f("s_add_u32 s%d, s%d, %d" % (sF0, sF0, VB))
    f("v_add_u32 v%d, s%d, v%d" % (vVW, sF0, vF2))
    f("s_add_u32 s%d, s%d, %d" % (sF0, sWL, KS * 8192))
    f("v_add_u32 v%d, s%d, v%d" % (vKR, sF0, vL16))
    f("v_lshlrev_b32 v%d, 2, v%d" % (vF2, vF1))
    f("v_mov_b32 v%d, 0xff000000" % vF3)
    for e in range(4):
        if e: f("v_add_u32 v%d, 1, v%d" % (vF2, vF2))
        f("v_cmp_gt_u32 vcc, v%d, v%d" % (vF2, vF0))
        f("v_cndmask_b32_e64 v%d, v%d, 0, vcc" % (vM0 + e, vF3))
        f("v_cndmask_b32_e64 v%d, 0, v%d, vcc" % (vM1 + e, vF3))
    f("v_mov_b32 v%d, 0x%08x" % (vC, f2u(28 ** -0.5 * math.log2(math.e))))
    f("v_and_b32 v%d, 3, v%d" % (vF2, vL))
    f("v_lshrrev_b32 v%d, 2, v%d" % (vF3, vL))
    f("v_and_b32 v%d, 2, v%d" % (vF0, vL))
    f("v_lshlrev_b32 v%d, 2, v%d" % (vF0, vF0))
    f("v_xor_b32 v%d, v%d, v%d" % (vF0, vF3, vF0))
    f("v_lshlrev_b32 v%d, 3, v%d" % (vF0, vF0))
    f("v_lshl_add_u32 v%d, v%d, 7, v%d" % (vF0, vF2, vF0))
    f("s_add_u32 s%d, s%d, %d" % (sF0, sWL, VB))
    f("NEED w1done")
    f("v_add_u32 v%d, s%d, v%d" % (vVR, sF0, vF0))
    f("v_lshlrev_b32 v%d, 7, v%d" % (vF3, vF3))
    f("v_lshl_add_u32 v%d, v%d, 3, v%d" % (vF3, vF2, vF3))
    f("v_bfe_u32 v%d, v%d, 3, 2" % (vF2, vL))
    f("s_lshr_b32 s%d, s%d, 1" % (sFa, sW))
    f("s_and_b32 s%d, s%d, 2" % (sF0, sFa))
    f("v_xor_b32 v%d, s%d, v%d" % (vF2, sF0, vF2))
    f("v_lshl_add_u32 v%d, v%d, 5, v%d" % (vF3, vF2, vF3))
    f("s_lshl_b32 s%d, s%d, 12" % (sF0, sFa))
    f("v_add_u32 v%d, s%d, v%d" % (vBR[0][0], sF0, vF3))
    for c in (1, 2, 3): f("v_xor_b32 v%d, %d, v%d" % (vBR[c][0], 32 * c, vBR[0][0]))
    for g_ in vBR:
        f("v_add_u32 v%d, 0x10000, v%d" % (g_[1], g_[0]))
        f("v_add_u32 v%d, 0x20000, v%d" % (g_[2], g_[0]))
    f("s_and_b32 s%d, s%d, 1" % (sFb, sW))
    f("s_lshl_b32 s%d, s%d, 1" % (sFb, sFb))
    f("s_and_b32 s%d, s%d, 1" % (sF0, sFa))
    f("s_cselect_b32 s%d, %d, %d" % (sADL, -1, 1))
    f("s_add_u32 s%d, s%d, s%d" % (sTB, sFb, sF0))
    f("s_mul_i32 s%d, s%d, %d" % (sADL, sADL, 72 * 1024))
    f("s_mul_i32 s%d, s%d, 72" % (sF0, sTB))
    f("s_add_u32 s%d, s%d, s%d" % (sF0, sF0, sFa))
    f("s_lshl_b32 s%d, s%d, 10" % (sF0, sF0))
    f("v_add_u32 v%d, s%d, v%d" % (vAV, sF0, vL16))
    f("s_lshr_b32 s%d, s%d, 1" % (sF0, sRT))
    f("s_lshl_b32 s%d, s%d, 13" % (sF0, sF0))
    f("s_add_u32 s%d, s%d, %d" % (sF0, sF0, WS_F1 + 21 * 128))
    f("v_min_u32 v%d, 28, v%d" % (vF0, vL))
    f("NEED w2done")
    f("v_lshl_add_u32 v%d, v%d, 7, s%d" % (vPH, vF0, sF0))
    marks = set()
    def need_ok(what):
        return all('vm' in u for u in (w1u if what == 'w1done' else w2u))
    def fill(n):
        while F and n > 0:
            t = F[0]
            if t.startswith("MARK"): marks.add(t.split()[1]); F.pop(0); continue
            if t.startswith("NEED"):
                if not need_ok(t.split()[1]): return
                F.pop(0); continue
            a(F.pop(0)); n -= 1
            while F and F[0].startswith("s_cselect"): a(F.pop(0))
            if t.startswith("v_cmp"):
                k_ = max([q for q in range(min(3, len(F))) if F[q].startswith("v_cndmask") and not any(F[z].startswith("v_cmp") for z in range(q))])
                for q in range(k_ + 1): a(F.pop(0)); n -= 1
        while F and F[0].startswith("MARK"): marks.add(F.pop(0).split()[1])
    def fill_until(mark):
        while mark not in marks:
            k = len(F); fill(1); assert len(F) < k or mark in marks, mark

    def ldsaddr(grp_, slot, extra):
        w = slot // 8
        off = (slot - 8 * w) * 8192 + extra
        assert 0 <= off < 65536, off
        return "v%d offset:%d" % (grp_[w], off)

    slow = []
    def poll_issue(vaddr, vdst, mask):
        a("s_mov_b64 exec, 0x%x" % mask)
        r_ = a("buffer_load_dword v%d, v%d, %s, s%d offen sc1" % (vdst, vaddr, srd(WS), sPO))
        a("s_mov_b64 exec, -1")
        return (r_, vaddr, vdst, mask)
    def poll_check(p_, lbl):
        vm, vaddr, vdst, mask = p_
        a("s_and_b32 s%d, s%d, 0x%x" % (sT2, sPM, mask))
        a.wait(vm=vm)
        a("v_cmp_ne_u32 vcc, s%d, v%d" % (sTAG, vdst))
        a("s_and_b32 s%d, vcc_lo, s%d" % (sT1, sT2))
        a("s_cbranch_scc1 %s_slow" % lbl)
        a.label(lbl + "_back")
        slow.append((vaddr, vdst, mask, lbl))
    def flag_store(soff, imm):
        if imm >= 4096:
            a("s_add_u32 s%d, s%d, %d" % (sT1, soff, imm)); soff = sT1; imm = 0
        return a("buffer_store_dword v%d, v%d, %s, s%d offen offset:%d sc1" % (vTAGV, vFL, srd(WS), soff, imm))

    def p1_reads(wu, buf, xj=None):
        L = []
        for ks in range(2):
            if xj is not None:
                xu = grp[xj][0]
                for tb in range(2):
                    r = vX + ((tb * 14) + 2 * xj + ks) * 4
                    L.append("ds_read_b128 v[%d:%d], %s" % (r, r + 3, ldsaddr(vXR[ks], xu['slot'], tb * 2048)))
            for cb in range(2):
                for h in range(2):
                    r = vWF[buf] + (ks * 2 + cb) * 4 + 2 * h
                    L.append("ds_read_b64_tr_b16 v[%d:%d], %s" % (r, r + 1, ldsaddr(vWR[cb], wu['slot'], ks * 4096 + h * 512)))
        return L
    def emit_all(L):
        last = None
        while L: last = a(L.pop(0))
        return last
    def p1_mfmas(j, buf, bg):
        n = 0
        for ks in range(2):
            for tb in range(2):
                for cb in range(2):
                    d = vACC + (tb * 2 + cb) * 4
                    wf = vWF[buf] + (ks * 2 + cb) * 4
                    xf = vX + ((tb * 14) + 2 * j + ks) * 4
                    c = "0" if (j == 0 and ks == 0) else "v[%d:%d]" % (d, d + 3)
                    a("v_mfma_f32_16x16x32_bf16 v[%d:%d], v[%d:%d], v[%d:%d], %s" % (d, d + 3, wf, wf + 3, xf, xf + 3, c))
                    n += 1
                    bg(n)
    def pack(dst, tb, cb, relu):
        d = vACC + (tb * 2 + cb) * 4
        a("v_cvt_pk_bf16_f32 v%d, v%d, v%d" % (dst, d, d + 1))
        a("v_cvt_pk_bf16_f32 v%d, v%d, v%d" % (dst + 1, d + 2, d + 3))
        if relu:
            a("v_pk_max_i16 v%d, v%d, 0" % (dst, dst))
            a("v_pk_max_i16 v%d, v%d, 0" % (dst + 1, dst + 1))
    def epi_h(htile_setup):
        htile_setup()
        a("s_lshl_b32 s%d, s%d, 11" % (sT0, sT0))
        a("s_mul_i32 s%d, s%d, %d" % (sT1, sR, 8 * 72 * 1024))
        a("s_add_u32 s%d, s%d, s%d" % (sT0, sT0, sT1))
        a("s_add_u32 s%d, s%d, %d" % (sT0, sT0, WS_AH))
        a("s_add_u32 s%d, s%d, %d" % (sT1, sT0, 72 * 1024))
        pack(vPK, 0, 0, True); pack(vPK + 2, 0, 1, True)
        a("buffer_store_dwordx4 v[%d:%d], v%d, %s, s%d offen sc1" % (vPK, vPK + 3, vHS, srd(WS), sT0))
        pack(vPK + 4, 1, 0, True); pack(vPK + 6, 1, 1, True)
        return a("buffer_store_dwordx4 v[%d:%d], v%d, %s, s%d offen sc1" % (vPK + 4, vPK + 7, vHS, srd(WS), sT1))
    def epi_qkv(tile_add):
        a("s_add_u32 s%d, s%d, %d" % (sT0, sCG, tile_add))
        a("s_lshl_b32 s%d, s%d, 4" % (sT0, sT0))
        a("s_lshr_b32 s%d, s%d, 2" % (sT1, sW))
        a("s_lshl_b32 s%d, s%d, 3" % (sT1, sT1))
        a("s_add_u32 s%d, s%d, s%d" % (sT0, sT0, sT1))
        a("v_lshrrev_b32 v%d, 4, v%d" % (vT0, vL))
        a("v_add_u32 v%d, s%d, v%d" % (vT0, sT0, vT0))
        a("s_lshl_b32 s%d, s%d, 2" % (sT0, sR))
        a("s_and_b32 s%d, s%d, 3" % (sT1, sW))
        a("s_add_u32 s%d, s%d, s%d" % (sT0, sT0, sT1))
        a("s_lshl_b32 s%d, s%d, 11" % (sT0, sT0))
        a("s_add_u32 s%d, s%d, %d" % (sT0, sT0, WS_QKV))
        a("v_and_b32 v%d, 0xf0, v%d" % (vT3, vL16))
        last = None
        for cb in range(2):
            if cb: a("v_add_u32 v%d, 4, v%d" % (vT0, vT0))
            a("v_mul_u32_u24 v%d, 9363, v%d" % (vT1, vT0))
            a("v_lshrrev_b32 v%d, 16, v%d" % (vT1, vT1))
            a("v_mul_u32_u24 v%d, 7, v%d" % (vT2, vT1))
            a("v_sub_u32 v%d, v%d, v%d" % (vT2, vT0, vT2))
            a("v_lshl_add_u32 v%d, v%d, 8, v%d" % (vT2, vT2, vT3))
            a("v_lshl_add_u32 v%d, v%d, 17, v%d" % (vT2, vT1, vT2))
            pk = vPK + 4 * cb
            pack(pk, 0, cb, False); pack(pk + 2, 1, cb, False)
            if cfg.x_nost == 1: a("s_mov_b32 s%d, %d" % (sT0, OOB))
            last = a("buffer_store_dwordx4 v[%d:%d], v%d, %s, s%d offen %s" % (pk, pk + 3, vT2, srd(WS), sT0, "" if cfg.x_nost == 2 else "sc1"))
        return last
    assert all((ci * 9363) >> 16 == ci // 7 for ci in range(340))

    cus = [(p, j) for p in range(3) for j in range(7)]
    def wunit(i):
        p, j = cus[i]; return U[('w', p, j)]
    bar = {i: 1 for i in range(7)}
    bar.update({7: 1, 8: 2, 10: 2, 12: 2, 14: 2, 16: 2, 18: 3})
    quota = [int(x) for x in cfg.quota.split(',')]
    store_vm = {}
    pending = []
    def do_barrier(i):
        n = bar[i]
        need = max(wunit(k)['vm'] for k in range(i, min(i + n, len(cus))))
        pp = {cfg.pub0: 0, cfg.pub1: 1}.get(i)
        if pp is not None: need = max(need, store_vm[pp]); fill_until("pub")
        stamp("bw%d" % i)
        if i == cfg.pq_check: poll_check(kq['poll'], "L_pq"); stamp("pq")
        a.wait(vm=need)
        a("s_barrier")
        stamp("bb%d" % i)
        for u in pending: release(u)
        pending.clear()
        if pp is not None: flag_store(sF1, 2048 * pp); stamp("pub%d" % pp)
    kq = {}
    def qk_base(dst):
        a("s_lshl_b32 s%d, s%d, 17" % (dst, sHEAD))
        a("s_lshl_b32 s%d, s%d, 13" % (sT1, sRA))
        a("s_add_u32 s%d, s%d, s%d" % (dst, dst, sT1))
        a("s_add_u32 s%d, s%d, %d" % (dst, dst, WS_QKV))
    def kv_load(m, i, r):
        a("s_add_u32 s%d, s%d, %d" % (sT1, sT0, m * 16 * 131072 - (2 - i) * 8192))
        if i < 2:
            a("s_cmp_ge_u32 s%d, %d" % (sRA, 2 - i))
            a("s_cselect_b32 s%d, s%d, %d" % (sT1, sT1, OOB))
        return a("buffer_load_dwordx4 v[%d:%d], v%d, %s, s%d offen sc1" % (r, r + 3, vKVO, srd(WS), sT1))
    a("s_waitcnt lgkmcnt(0)")
    do_barrier(0)
    rd = emit_all(p1_reads(wunit(0), 0, 0))
    for i, (p, j) in enumerate(cus):
        a.wait(lg=rd)
        pending.append(wunit(i))
        if p == 0: pending.extend(grp[j][:2])
        RL = []
        if i + 1 < len(cus):
            if i + 1 in bar: do_barrier(i + 1)
            RL = p1_reads(wunit(i + 1), (i + 1) & 1, cus[i + 1][1] if cus[i + 1][0] == 0 else None)
        pos = {3: (2, 5, 7), 2: (5, 7), 1: (6,), 0: ()}[quota[i]]
        rdl = [None]
        def bg(n):
            did = False
            for _ in range(2):
                if RL: rdl[0] = a(RL.pop(0)); did = True
            if n in pos: issue(1)
            elif i >= 7 and not (cfg.x_nofill and i < 14): fill(1 if did else 3)
            if n == 4 and i == cfg.pq_issue:
                fill_until("kq")
                kq['poll'] = poll_issue(vPQ, vPD0, 0xff)
            if i + 1 == cfg.pq_check and n in (1, 3, 4, 6):
                if n == 1:
                    qk_base(sT0)
                    kq['q0'] = a("buffer_load_dwordx2 v[%d:%d], v%d, %s, s%d offen sc1" % (vQ, vQ + 1, vQO0, srd(WS), sT0))
                    kq['q1'] = a("buffer_load_dwordx2 v[%d:%d], v%d, %s, s%d offen offset:1024 sc1" % (vQ + 2, vQ + 3, vQO1, srd(WS), sT0))
                else:
                    ii = {3: 2, 4: 1, 6: 0}[n]; kq['k%d' % ii] = kv_load(1, ii, vKL[ii])
            if n == 1 and i == 20:
                while F: k_ = len(F); fill(1); assert len(F) < k_
                kq['pv'] = poll_issue(vPQ, vPD0, 0x3f00)
                kq['ph'] = poll_issue(vPH, vPD1, 0x3ff)
            if i == 20 and n in (3, 5, 7):
                ii = {3: 2, 5: 1, 7: 0}[n]; r = vKL[ii]
                assert all(s in state['free'] for s in range(KS, KS + 3))
                a.wait(vm=kq['k%d' % ii])
                if ii < 2:
                    a("s_cmp_ge_u32 s%d, %d" % (sRA, 2 - ii))
                    a("s_cselect_b32 s%d, 0, 0xff7f" % sT1)
                    a("v_and_or_b32 v%d, v%d, s%d, v%d" % (r, vPADM, sT1, r))
                    a("v_and_or_b32 v%d, v%d, s%d, v%d" % (r + 2, vPADM, sT1, r + 2))
                a("ds_write2st64_b64 v%d, v[%d:%d], v[%d:%d] offset0:%d offset1:%d" % (vKW, r, r + 1, r + 2, r + 3, ii * 16, ii * 16 + 2))
        p1_mfmas(j, i & 1, bg)
        assert not RL
        rd = rdl[0]
        if j == 6:
            if p == 0: store_vm[0] = epi_qkv(0)
            elif p == 1:
                fill_until("hs")
                a("s_cmp_lt_u32 s%d, 5" % sCG)
                a("s_cbranch_scc1 L_epi1q")
                v0 = a.vm
                epi_h(lambda: a("s_sub_u32 s%d, s%d, 5" % (sT0, sCG)))
                a("s_branch L_epi1d")
                a.label("L_epi1q")
                a.vm = v0
                a("s_nop 7")
                store_vm[1] = epi_qkv(16)
                a.label("L_epi1d")
            else:
                store_vm[2] = epi_h(lambda: a("s_add_u32 s%d, s%d, 11" % (sT0, sCG)))
            stamp("p%d" % p)
    assert state['next'] == len(order), (state['next'], len(order))
    for s in range(KS, KS + 3): state['free'].remove(s)

    vA = vX
    a_vm = {}
    an = [0]
    alim = [10]
    def issue_a(lim):
        n = an[0]
        if n >= lim: return False
        an[0] += 1
        r = vA + 4 * n
        if n % 2 == 0: a("s_add_u32 s%d, s%d, s%d" % (sAC, sABASE, sAOFF))
        else: a("s_add_u32 s%d, s%d, s%d" % (sAC, sAC, sADL))
        a_vm[n] = a("buffer_load_dwordx4 v[%d:%d], v%d, %s, s%d offen sc1" % (r, r + 3, vAV, srd(WS), sAC))
        if n % 2 == 0:
            st_ = n // 2
            if st_ < 4:
                a("s_add_u32 s%d, s%d, 4096" % (sAOFF, sAOFF))
                a("s_cmp_ge_u32 s%d, %d" % (sAOFF, 10 * 2048))
                a("s_cselect_b32 s%d, 0, s%d" % (sAOFF, sAOFF))
            elif st_ == 4: a("s_lshl_b32 s%d, s%d, 11" % (sAOFF, sRL))
            elif st_ < 12:
                a("s_add_u32 s%d, s%d, 4096" % (sAOFF, sAOFF))
                a("s_cmp_ge_u32 s%d, %d" % (sAOFF, 26 * 2048))
                a("s_cselect_b32 s%d, %d, s%d" % (sAOFF, 10 * 2048, sAOFF))
            elif st_ == 12: a("s_mov_b32 s%d, %d" % (sAOFF, 26 * 2048))
        return True
    a("v_cmp_lt_u32 vcc, 47, v%d" % vL)
    a("v_mov_b32 v%d, 0x3f80" % vT0)
    a("v_cndmask_b32 v%d, v%d, v%d, vcc" % (vQ + 2, vQ + 2, vT0))
    poll_check(kq['pv'], "L_pv")
    stamp("pv")
    a("s_cmp_lg_u32 s%d, 0" % sROLE)
    a("s_cbranch_scc1 L_helper")
    sv = (a.vm, a.vm_done, a.lg, a.lg_done)
    def attention(main):
        if main:
            poll_check(kq['ph'], "L_pe")
            stamp("pe")
        a.wait_all_lg()
        a.wait(vm=max(bu[12]['vm'], kq['ph'][0]))
        a("s_barrier")
        stamp("ab1")
        if main:
            for u in pending: release(u)
            pending.clear()
            for s in range(VS, VS + 3): state['free'].remove(s)
        krd = {}
        def kread(i):
            r = vKF + 4 * (i % 3)
            krd[i] = a("ds_read_b128 v[%d:%d], v%d offset:%d" % (r, r + 3, vKR, i * 1024))
        kread(0); kread(1); kread(2)
        qk_base(sT0)
        for ii in (2, 1, 0): kq['v%d' % ii] = kv_load(2, ii, vVL[ii])
        for i in range(17):
            a.wait(lg=krd[i])
            r = vKF + 4 * (i % 3); d = vS + 4 * i
            c = "v[%d:%d]" % (vM0, vM0 + 3) if i == 0 else ("v[%d:%d]" % (vM1, vM1 + 3) if i == 16 else "0")
            a("v_mfma_f32_16x16x32_bf16 v[%d:%d], v[%d:%d], v[%d:%d], %s" % (d, d + 3, r, r + 3, vQ, vQ + 3, c))
            if i + 3 < 17: kread(i + 3)
            if i % 4 == 3 and main: issue_a(10)
            if i >= 3:
                t = vS + 4 * (i - 3)
                if i == 3:
                    a("v_max3_f32 v%d, v%d, v%d, v%d" % (vMX, t, t + 1, t + 2))
                    a("v_max_f32 v%d, v%d, v%d" % (vMX, vMX, t + 3))
                else:
                    a("v_max3_f32 v%d, v%d, v%d, v%d" % (vMX, vMX, t, t + 1))
                    a("v_max3_f32 v%d, v%d, v%d, v%d" % (vMX, vMX, t + 2, t + 3))
        a("s_movk_i32 s%d, 0x3f80" % sT1)
        for ii in (2, 1, 0):
            r = vVL[ii]
            a.wait(vm=kq['v%d' % ii])
            a("v_and_or_b32 v%d, v%d, s%d, v%d" % (r, vPADM, sT1, r))
            a("v_and_or_b32 v%d, v%d, s%d, v%d" % (r + 2, vPADM, sT1, r + 2))
            a("ds_write2st64_b64 v%d, v[%d:%d], v[%d:%d] offset0:%d offset1:%d" % (vVW, r, r + 1, r + 2, r + 3, ii * 16, ii * 16 + 2))
        for i in range(14, 17):
            t = vS + 4 * i
            a("v_max3_f32 v%d, v%d, v%d, v%d" % (vMX, vMX, t, t + 1))
            a("v_max3_f32 v%d, v%d, v%d, v%d" % (vMX, vMX, t + 2, t + 3))
        a("v_mov_b32 v%d, v%d" % (vT0, vMX))
        a("v_permlane32_swap_b32 v%d, v%d" % (vT0, vMX))
        a("v_max_f32 v%d, v%d, v%d" % (vMX, vMX, vT0))
        a("v_mov_b32 v%d, v%d" % (vT0, vMX))
        a("v_permlane16_swap_b32 v%d, v%d" % (vT0, vMX))
        a("v_max_f32 v%d, v%d, v%d" % (vMX, vMX, vT0))
        a("v_mul_f32 v%d, v%d, v%d" % (vMC, vMX, vC))
        a("v_sub_f32 v%d, 0, v%d" % (vMC, vMC))
        stamp("qk")
        vVFs = [108, 240]
        vrd = {}
        def vread(pi):
            b = vVFs[pi & 1]
            last = None
            for db in range(2):
                for hh in range(2):
                    i = 2 * pi + hh
                    if i > 16: continue
                    r = b + db * 4 + hh * 2
                    last = a("ds_read_b64_tr_b16 v[%d:%d], v%d offset:%d" % (r, r + 1, vVR, i * 1024 + db * 512))
            vrd[pi] = last
        def sm(pi, bgf):
            nt = 2 if pi < 8 else 1
            t = vS + 8 * pi
            for e in range(4 * nt):
                a("v_fma_f32 v%d, v%d, v%d, v%d" % (t + e, t + e, vC, vMC))
            for e in range(4 * nt):
                a("v_exp_f32 v%d, v%d" % (t + e, t + e))
                bgf(e)
            for e in range(2 * nt):
                a("v_cvt_pk_bf16_f32 v%d, v%d, v%d" % (t + e, t + 2 * e, t + 2 * e + 1))
        def pv(pi):
            nt = 2 if pi < 8 else 1
            t = vS + 8 * pi
            a.wait(lg=vrd[pi])
            b = vVFs[pi & 1]
            for db in range(2):
                d = vOA + 4 * db
                c = "0" if pi == 0 else "v[%d:%d]" % (d, d + 3)
                if nt == 2:
                    a("v_mfma_f32_16x16x32_bf16 v[%d:%d], v[%d:%d], v[%d:%d], %s" % (d, d + 3, b + 4 * db, b + 4 * db + 3, t, t + 3, c))
                else:
                    a("v_mfma_f32_16x16x16_bf16 v[%d:%d], v[%d:%d], v[%d:%d], %s" % (d, d + 3, b + 4 * db, b + 4 * db + 1, t, t + 1, c))
        bq = [bu[13], bu[14], bu[15]] if main else []
        sm(0, lambda e: issue_a(alim[0]) if (e in (1, 5) and main) else None)
        a.wait_all_lg()
        a.wait(vm=store_vm[2])
        a("s_barrier")
        flag_store(sF1, 4096)
        stamp("ab2")
        if main:
            for s in range(KS, KS + 3): state['free'].add(s)
        vread(0); vread(1)
        for pi in range(9):
            def bgf(e):
                if e in (1, 5) and main:
                    if not issue_a(alim[0]) and bq: assert try_issue(bq.pop(0))
            if pi + 1 < 9: sm(pi + 1, bgf)
            pv(pi)
            if pi + 2 < 9: vread(pi + 2)
            if pi == cfg.lpoll_pair and main: kq['pl'] = poll_issue(vPH, vPD2, 0x3fffc00)
        while bq: assert try_issue(bq.pop(0))
        a("v_mov_b32 v%d, v%d" % (vT0, vOA + 4))
        a("v_mov_b32 v%d, v%d" % (vT1, vOA + 4))
        a("v_permlane32_swap_b32 v%d, v%d" % (vT0, vT1))
        a("v_mov_b32 v%d, v%d" % (vT0, vT1))
        a("v_permlane16_swap_b32 v%d, v%d" % (vT0, vT1))
        a("v_rcp_f32 v%d, v%d" % (vT1, vT1))
        a("v_cmp_lt_u32 vcc, 47, v%d" % vL)
        a("v_cndmask_b32_e64 v%d, v%d, 0, vcc" % (vT0, vT1))
        for e in range(4): a("v_mul_f32 v%d, v%d, v%d" % (vOA + e, vOA + e, vT1))
        for e in range(4): a("v_mul_f32 v%d, v%d, v%d" % (vOA + 4 + e, vOA + 4 + e, vT0))
        for e in range(4): a("v_cvt_pk_bf16_f32 v%d, v%d, v%d" % (vOA + e, vOA + 2 * e, vOA + 2 * e + 1))
        a("s_lshl_b32 s%d, s%d, 3" % (sFa, sRA))
        a("s_add_u32 s%d, s%d, s%d" % (sFa, sFa, sW))
        a("s_mul_i32 s%d, s%d, 72" % (sT0, sFa))
        a("s_add_u32 s%d, s%d, s%d" % (sT0, sT0, sHEAD))
        a("s_lshl_b32 s%d, s%d, 10" % (sT0, sT0))
        a("s_add_u32 s%d, s%d, %d" % (sT0, sT0, WS_AH + 56 * 1024))
        o_vm = a("buffer_store_dwordx4 v[%d:%d], v%d, %s, s%d offen sc1" % (vOA, vOA + 3, vL16, srd(WS), sT0))
        a("s_lshl_b32 s%d, s%d, 4" % (sFa, sRA))
        a("s_add_u32 s%d, s%d, s%d" % (sFa, sFa, sHEAD))
        a("s_lshl_b32 s%d, s%d, 7" % (sFa, sFa))
        a("s_add_u32 s%d, s%d, %d" % (sFa, sFa, WS_F2))
        stamp("attn")
        return o_vm
    o_vm = attention(True)

    vBF = [40, 56, 240]
    vAB = 72
    vAA = vA + 32
    vPO, vG0, vG1, vPD3 = 104, 105, 106, 107
    steps = [(bu[2 * k], bu[2 * k + 1]) for k in range(13)] + [(bou[2 * k], bou[2 * k + 1]) for k in range(4)] + [(bu[26], bu[27])]
    NS = 18
    def areg(i, t):
        if i < 13: return vA + 8 * i + 4 * t
        if i < 17: return vA + 8 * (i - 13) + 4 * t
        return vA + 8 * 13 + 4 * t
    ga_vm = {}
    def g2_reads(i):
        u = steps[i][0]
        assert steps[i][1]['slot'] == u['slot'] + 1
        return ["ds_read_b64_tr_b16 v[%d:%d], %s" % (vBF[i % 3] + c * 4 + 2 * h, vBF[i % 3] + c * 4 + 2 * h + 1, ldsaddr(vBR[c], u['slot'], h * 2048)) for c in range(4) for h in range(2)]
    rdq = {}
    rdq[0] = emit_all(g2_reads(0)); rdq[1] = emit_all(g2_reads(1))
    a("s_lshr_b32 s%d, s%d, 2" % (sT0, sW))
    a("s_mul_i32 s%d, s%d, %d" % (sT1, sT0, 4 * 896))
    a("v_subrev_u32 v%d, s%d, v%d" % (vBO, sT1, vB))
    a("s_lshr_b32 s%d, s%d, 1" % (sT1, sRT))
    a("s_lshl_b32 s%d, s%d, 11" % (sT1, sT1))
    a("s_add_u32 s%d, s%d, %d" % (sT1, sT1, WS_F2))
    a("v_lshl_add_u32 v%d, v%d, 7, s%d" % (vPO, vL, sT1))
    a("s_lshl_b32 s%d, s%d, 2" % (sFb, sRT))
    a("s_add_u32 s%d, s%d, s%d" % (sFb, sFb, sTB))
    Q = []
    for n in range(an[0], 26):
        Q.append(('a', n))
        if n in (11, 13): Q.append(('u', bou[(n - 11) // 2]))
        if n >= 16: Q.append(('u', bu[n]))
    for n in range(8):
        Q.append(('o', n))
        if n >= 2: Q.append(('u', bou[n]))
    Q += [('u', bu[26]), ('u', bu[27]), ('a', 26), ('a', 27), ('g', 0), ('g', 1)]
    ok = dict(o=False, t=False)
    cur = [0]
    def q_issue():
        for k_, (kind, x) in enumerate(Q):
            if kind == 'a':
                if x >= 26 and not ok['t']: continue
                if x != an[0]: continue
                issue_a(28)
            elif kind == 'u':
                if x['kind'] == 'b' and 'vm' not in bu[x['j'] - 1]: continue
                if x['j'] % 2 and x['slot'] is None: continue
                if not try_issue(x): continue
            elif kind == 'o':
                if not ok['o'] or cur[0] <= x // 2: continue
                r = areg(13 + x // 2, x % 2)
                a("s_add_u32 s%d, s%d, %d" % (sT3, sRO, x & ~1))
                a("s_and_b32 s%d, s%d, 7" % (sT3, sT3))
                a("s_lshl_b32 s%d, s%d, 11" % (sT3, sT3))
                a("s_add_u32 s%d, s%d, s%d" % (sT3, sT3, sABASE))
                a("s_add_u32 s%d, s%d, %d" % (sT3, sT3, 56 * 1024))
                if x % 2: a("s_add_u32 s%d, s%d, s%d" % (sT3, sT3, sADL))
                ga_vm[x] = a("buffer_load_dwordx4 v[%d:%d], v%d, %s, s%d offen sc1" % (r, r + 3, vAV, srd(WS), sT3))
            elif kind == 'g':
                if not ok['t']: continue
                a("s_xor_b32 s%d, s%d, %d" % (sT3, sFb, x))
                a("s_lshl_b32 s%d, s%d, 6" % (sT3, sT3))
                a("s_add_u32 s%d, s%d, %d" % (sT3, sT3, WS_G))
                a("v_and_b32 v%d, 15, v%d" % (vT0, vL))
                a("v_lshlrev_b32 v%d, 2, v%d" % (vT0, vT0))
                kq['g'] = a("buffer_load_dword v%d, v%d, %s, s%d offen sc1" % (vG0 + x, vT0, srd(WS), sT3))
            Q.pop(k_); return True
        return False
    vis = [6]
    gq = [int(x) for x in cfg.gq.split(',')]
    def g2_barrier(i):
        upto = min(i + 4, NS)
        need = -1
        for k_ in range(vis[0], upto):
            for u in steps[k_]:
                while 'vm' not in u:
                    assert q_issue(), "stream stuck at %d" % k_
                need = max(need, u['vm'])
        if i == cfg.opub: need = max(need, o_vm)
        if i == 0: poll_check(kq['pl'], "L_pl"); stamp("pl")
        if i == cfg.ocheck: poll_check(kq['po'], "L_po"); ok['o'] = True; stamp("po")
        if i == cfg.tcheck: poll_check(kq['pt'], "L_pt"); ok['t'] = True; stamp("pt")
        if need >= 0: a.wait(vm=need)
        a("s_barrier")
        vis[0] = max(vis[0], upto)
        for u in pending: release(u)
        pending.clear()
        if i == 0:
            for s in range(VS, VS + 3): state['free'].add(s)
        if i == cfg.opub: flag_store(sFa, 0); stamp("opub")
    PRE = []
    for i in range(NS):
        cur[0] = i
        a.wait(lg=rdq[i])
        pending.extend(steps[i])
        if i % 2 == 0 and i + 2 < NS: g2_barrier(i)
        stamp("g%d" % i)
        RL = []
        if i + 2 < NS:
            assert i + 2 < vis[0], (i, vis[0])
            RL = g2_reads(i + 2)
        if i == cfg.opoll: kq['po'] = poll_issue(vPO, vPD3, 0xffff)
        if i == cfg.tpoll: kq['pt'] = poll_issue(vPH, vPD3, 0x1c000000)
        def avm(t):
            if i < 13: return a_vm.get(2 * i + t)
            if i < 17: return ga_vm.get(2 * (i - 13) + t)
            return a_vm.get(26 + t)
        acc = vAA if 13 <= i < 17 else vAB
        if i == 17:
            a.wait(vm=kq['g'])
            PRE = ["v_mul_f32 v%d, v%d, v%d" % (vAA + e, vAA + e, vG0 + e // 16) for e in range(32)]
            for t in range(2):
                PRE += ["v_sub_f32 v%d, 1.0, v%d" % (vG0 + t, vG0 + t), "v_cvt_pk_bf16_f32 v%d, v%d, v%d" % (vG0 + t, vG0 + t, vG0 + t), "v_lshlrev_b32 v%d, 16, v%d" % (vG0 + t, vG0 + t)]
        n = 0
        for t in range(2):
            while avm(t) is None: assert q_issue(), "A stuck at %d" % i
            a.wait(vm=avm(t))
            for c in range(4):
                d = acc + 16 * t + 4 * c; bf = vBF[i % 3] + 4 * c; af = areg(i, t)
                cc = "0" if i in (0, 13) else "v[%d:%d]" % (d, d + 3)
                a("v_mfma_f32_16x16x32_bf16 v[%d:%d], v[%d:%d], v[%d:%d], %s" % (d, d + 3, bf, bf + 3, af, af + 3, cc))
                if RL: rdq[i + 2] = a(RL.pop(0))
                if n in gq: q_issue()
                if n >= 1:
                    for _ in range(5):
                        if PRE: a(PRE.pop(0))
                n += 1
    assert not Q, Q
    emit_all(PRE)
    stamp("g2end")
    a("s_barrier")
    a("s_mul_i32 s%d, s%d, 6144" % (sT0, sW))
    a("v_add_u32 v%d, s%d, v%d" % (vT0, sT0, vL16))
    for z in (1, 2, 3, 0):
        b_ = 16 * (z & 1) + 8 * (z >> 1)
        for e in range(8): a("v_fma_f32 v%d, v%d, v%d, v%d" % (vAB + b_ + e, vAB + b_ + e, vG0 + (z & 1), vAA + b_ + e))
        if z:
            for h in range(2): a("ds_write_b128 v%d, v[%d:%d] offset:%d" % (vT0, vAB + b_ + 4 * h, vAB + b_ + 4 * h + 3, (z - 1) * 2048 + h * 1024))
    vRA = [40, 41, 42]
    for z in (1, 2, 3):
        a("s_xor_b32 s%d, s%d, %d" % (sT0, sW, z << 1))
        a("s_mul_i32 s%d, s%d, 6144" % (sT0, sT0))
        a("v_add_u32 v%d, s%d, v%d" % (vRA[z - 1], sT0, vL16))
    a("s_mul_i32 s%d, s%d, %d" % (sT0, sFb, 16 * 896))
    a("s_lshl_b32 s%d, s%d, 7" % (sT1, sCT))
    a("s_add_u32 s%d, s%d, s%d" % (sT0, sT0, sT1))
    a("s_lshr_b32 s%d, s%d, 2" % (sT1, sW))
    a("s_lshl_b32 s%d, s%d, 6" % (sT1, sT1))
    a("s_add_u32 s%d, s%d, s%d" % (sT0, sT0, sT1))
    a("v_and_b32 v%d, 15, v%d" % (vT2, vL))
    a("v_mul_u32_u24 v%d, 896, v%d" % (vT2, vT2))
    a("v_bfe_u32 v%d, v%d, 4, 1" % (vT3, vL))
    a("v_lshl_add_u32 v%d, v%d, 5, v%d" % (vT2, vT3, vT2))
    a("v_lshrrev_b32 v%d, 5, v%d" % (vT3, vL))
    a("v_lshl_add_u32 v%d, v%d, 4, v%d" % (vT2, vT3, vT2))
    a.wait_all_lg()
    a("s_barrier")
    vE = 44
    rr = []
    for z in (1, 2, 3):
        for h in range(2):
            r = vE + (z - 1) * 8 + 4 * h
            last = a("ds_read_b128 v[%d:%d], v%d offset:%d" % (r, r + 3, vRA[z - 1], (z - 1) * 2048 + h * 1024))
        rr.append(last)
    for z in (1, 2, 3):
        a.wait(lg=rr[z - 1])
        for e in range(8): a("v_add_f32 v%d, v%d, v%d" % (vAB + e, vAB + e, vE + (z - 1) * 8 + e))
    for e in range(4): a("v_cvt_pk_bf16_f32 v%d, v%d, v%d" % (vE + e, vAB + 2 * e, vAB + 2 * e + 1))
    a("v_permlane16_swap_b32 v%d, v%d" % (vE, vE + 2))
    a("v_permlane16_swap_b32 v%d, v%d" % (vE + 1, vE + 3))
    a("buffer_store_dwordx4 v[%d:%d], v%d, %s, s%d offen" % (vE, vE + 3, vT2, srd(OUT), sT0))
    a.label("L_fin")
    if cfg.dbgt:
        a("s_waitcnt vmcnt(0)")
        a("s_memrealtime s[100:101]")
        a("s_mov_b64 s[64:65], s[80:81]"); a("s_mov_b32 s66, 256"); a("s_mov_b32 s67, 0x20000")
        a("s_waitcnt lgkmcnt(0)")
        a("s_not_b32 s98, s98")
        a("v_mov_b32 v40, s98"); a("v_mov_b32 v41, s100")
        a("buffer_atomic_umax v40, v%d, s[64:67], 0 offen" % vFL)
        a("buffer_atomic_umax v41, v%d, s[64:67], 0 offen offset:4" % vFL)
    if cfg.stamps:
        a("s_waitcnt vmcnt(0)")
        stamp("end")
        a("s_waitcnt lgkmcnt(0)")
        for i in range(10): a("v_mov_b32 v%d, s%d" % (40 + i, sST + 2 * i))
        a("v_mov_b32 v50, s98"); a("v_mov_b32 v51, s%d" % sROLE); a("v_mov_b32 v52, s100"); a("v_mov_b32 v53, s100"); a("v_mov_b32 v54, s100")
        a("s_lshl_b32 s%d, s2, 3" % sT0)
        a("s_add_u32 s%d, s%d, s%d" % (sT0, sT0, sW))
        a("s_lshl_b32 s%d, s%d, 6" % (sT0, sT0))
        a("s_add_u32 s%d, s%d, %d" % (sT0, sT0, WS_STAMP))
        a("s_mov_b64 exec, 1")
        a("v_mov_b32 v56, 0")
        for k in range(4):
            a("buffer_store_dwordx4 v[%d:%d], v56, %s, s%d offen offset:%d" % (40 + 4 * k, 43 + 4 * k, srd(WS), sT0, 16 * k))
    a.label("L_end")
    a("s_endpgm")

    a.label("L_helper")
    a.vm, a.vm_done, a.lg, a.lg_done = sv
    a("s_nop 7")
    o_vm = attention(False)
    a("s_lshl_b32 s%d, s%d, 7" % (sT0, sCG))
    a("s_sub_u32 s%d, s%d, s%d" % (sF1, sF1, sT0))
    a("s_cmp_eq_u32 s%d, 2" % sROLE)
    a("s_cbranch_scc1 L_gate")
    rd = emit_all(p1_reads(bu[0], 0))
    for j in range(7):
        a.wait(lg=rd)
        RL = p1_reads(bu[j + 1], (j + 1) & 1) if j < 6 else []
        rdl = [None]
        def bgh(n):
            for _ in range(2):
                if RL: rdl[0] = a(RL.pop(0))
        p1_mfmas(j, j & 1, bgh)
        rd = rdl[0]
        if j == 2: a.wait(vm=o_vm); a("s_barrier"); flag_store(sFa, 0)
    epi_h(lambda: a("s_mov_b32 s%d, 27" % sT0))
    a.wait_all_vm()
    a("s_barrier")
    flag_store(sF1, 48 * 128)
    a("s_branch L_fin")
    a.label("L_gate")
    a("v_lshrrev_b32 v%d, 4, v%d" % (vT0, vL))
    a("v_lshlrev_b32 v%d, 4, v%d" % (vT0, vT0))
    GF = 40
    for j in range(7):
        for s in range(2):
            r = GF + (2 * j + s) * 4
            a("buffer_load_dwordx4 v[%d:%d], v%d, %s, s%d offen offset:%d" % (r, r + 3, vT0, srd(WO), sJ[j], 64 * s))
    a("s_waitcnt vmcnt(14)")
    a("s_barrier")
    flag_store(sFa, 0)
    a("s_waitcnt vmcnt(1)")
    for tb in range(2):
        for k in range(14):
            d = vACC + tb * 4; r = GF + k * 4; xf = vX + (tb * 14 + k) * 4
            c = "0" if k == 0 else "v[%d:%d]" % (d, d + 3)
            a("v_mfma_f32_16x16x32_bf16 v[%d:%d], v[%d:%d], v[%d:%d], %s" % (d, d + 3, r, r + 3, xf, xf + 3, c))
    a("v_cmp_gt_u32 vcc, 16, v%d" % vL)
    a("v_cndmask_b32 v%d, v%d, v%d, vcc" % (vT0, vACC + 4, vACC))
    a("v_cvt_pk_bf16_f32 v%d, v%d, v%d" % (vT0, vT0, vT0))
    a("v_lshlrev_b32 v%d, 16, v%d" % (vT0, vT0))
    a("v_mul_f32 v%d, 0xbfb8aa3b, v%d" % (vT0, vT0))
    a("v_exp_f32 v%d, v%d" % (vT0, vT0))
    a("v_add_f32 v%d, 1.0, v%d" % (vT0, vT0))
    a("v_rcp_f32 v%d, v%d" % (vT0, vT0))
    a("v_cvt_pk_bf16_f32 v%d, v%d, v%d" % (vT0, vT0, vT0))
    a("v_lshlrev_b32 v%d, 16, v%d" % (vT0, vT0))
    a("v_lshlrev_b32 v%d, 2, v%d" % (vT1, vL))
    a("s_lshl_b32 s%d, s%d, 2" % (sT0, sR))
    a("s_and_b32 s%d, s%d, 3" % (sT1, sW))
    a("s_add_u32 s%d, s%d, s%d" % (sT0, sT0, sT1))
    a("s_lshl_b32 s%d, s%d, 7" % (sT0, sT0))
    a("s_add_u32 s%d, s%d, %d" % (sT0, sT0, WS_G))
    a("s_mov_b32 exec_hi, 0")
    a("buffer_store_dword v%d, v%d, %s, s%d offen sc1" % (vT0, vT1, srd(WS), sT0))
    a("s_mov_b64 exec, -1")
    a.wait_all_vm()
    a("s_barrier")
    flag_store(sF1, 49 * 128)
    a("s_cmp_lg_u32 s2, 255")
    a("s_cbranch_scc1 L_fin")
    a("s_cmp_lg_u32 s%d, 7" % sW)
    a("s_cbranch_scc1 L_fin")
    a("v_lshrrev_b32 v%d, 2, v%d" % (vT0, vL))
    a("v_lshlrev_b32 v%d, 13, v%d" % (vT0, vT0))
    a("v_and_b32 v%d, 3, v%d" % (vT1, vL))
    a("v_lshl_add_u32 v%d, v%d, 9, v%d" % (vT0, vT1, vT0))
    a("v_add_u32 v%d, %d, v%d" % (vT0, WS_F1, vT0))
    a("s_mov_b32 s%d, %d" % (sCNT, cfg.poll_limit))
    a.label("L_epo_loop")
    for k in range(4): a("buffer_load_dword v%d, v%d, %s, 0 offen offset:%d sc1" % (40 + k, vT0, srd(WS), 128 * k), track=False)
    a("s_waitcnt vmcnt(0)")
    a("v_xor_b32 v40, v40, v%d" % vTAGV); a("v_xor_b32 v41, v41, v%d" % vTAGV)
    a("v_xor_b32 v42, v42, v%d" % vTAGV); a("v_xor_b32 v43, v43, v%d" % vTAGV)
    a("v_or3_b32 v40, v40, v41, v42"); a("v_or_b32 v40, v40, v43")
    a("v_cmp_ne_u32 vcc, 0, v40")
    a("s_sub_u32 s%d, s%d, 1" % (sCNT, sCNT))
    a("s_cbranch_scc1 L_epo_skip")
    a("s_cmp_lg_u64 vcc, 0")
    a("s_cbranch_scc1 L_epo_loop")
    a.label("L_epo_skip")
    a("s_add_u32 s%d, s%d, 1" % (sT0, sEPO))
    a("v_mov_b32 v%d, s%d" % (vT0, sT0))
    a("buffer_store_dword v%d, v%d, %s, 0 offen offset:%d sc1" % (vT0, vFL, srd(WS), WS_EPOCH), track=False)
    a("s_branch L_fin")
    for (vaddr, vdst, mask, lbl) in slow:
        a.label(lbl + "_slow")
        a("s_mov_b32 s%d, %d" % (sCNT, cfg.poll_limit))
        a("s_mov_b64 exec, 0x%x" % mask)
        a.label(lbl + "_loop")
        if cfg.sleep: a("s_sleep %d" % cfg.sleep)
        a("buffer_load_dword v%d, v%d, %s, 0 offen sc1" % (vdst, vaddr, srd(WS)), track=False)
        a("s_waitcnt vmcnt(0)")
        a("v_cmp_ne_u32 vcc, s%d, v%d" % (sTAG, vdst))
        a("s_sub_u32 s%d, s%d, 1" % (sCNT, sCNT))
        a("s_cbranch_scc1 %s_out" % lbl)
        a("s_cmp_lg_u32 vcc_lo, 0")
        a("s_cbranch_scc1 %s_loop" % lbl)
        a.label(lbl + "_out")
        a("s_mov_b64 exec, -1")
        a("s_branch %s_back" % lbl)
    a.label("L_code_end")
    a.raw('.section .rodata,"a"\n.p2align 6\n.amdhsa_kernel %s\n  .amdhsa_next_free_vgpr 256\n  .amdhsa_next_free_sgpr 102\n  .amdhsa_accum_offset 256\n  .amdhsa_group_segment_fixed_size 0\n  .amdhsa_kernarg_size 80\n  .amdhsa_user_sgpr_count 2\n  .amdhsa_user_sgpr_kernarg_segment_ptr 1\n  .amdhsa_system_sgpr_workgroup_id_x 1\n.end_amdhsa_kernel' % NAME)
    return a.text()

def f2u(x):
    import struct
    return struct.unpack('<I', struct.pack('<f', x))[0]

def build(cfg, path):
    import subprocess, re
    t = gen(cfg)
    t0 = t.replace("CODE_BYTES", "0x4000")
    open('_g.s', 'w').write(t0)
    r = subprocess.run("clang -x assembler -target amdgcn-amd-amdhsa -mcpu=gfx950 -c _g.s -o _g.o && llvm-objdump -h _g.o", shell=True, capture_output=True, text=True)
    if r.returncode: print(r.stderr[:4000]); raise SystemExit(1)
    size = int(re.search(r'\.text\s+([0-9a-f]+)', r.stdout).group(1), 16)
    nb = size - 128
    t = t.replace("CODE_BYTES", "0x%x" % nb)
    open(path, 'w').write(t)
    return size

if __name__ == "__main__":
    cfg = Cfg()
    out = 'gated_mix__sliding_block__dense_activation_relu__prompt.s'
    for arg in sys.argv[1:]:
        if arg.startswith('out='): out = arg[4:]
        else:
            k, v = arg.split('=')
            cur = getattr(cfg, k)
            setattr(cfg, k, type(cur)(int(v)) if isinstance(cur, (bool, int)) else v)
    print("code size", build(cfg, out), "->", out)
```
